```python
import torch

def _softmax(x, axis=-1):
    return torch.softmax(x, dim=axis)

def _gelu(x):
    return torch.nn.functional.gelu(x, approximate='tanh')

def _silu(x):
    return torch.nn.functional.silu(x)

def _sigmoid(x):
    return torch.sigmoid(x)

def _layernorm(x, axis=-1, eps=1e-05):
    m = x.mean(dim=axis, keepdim=True)
    v = x.var(dim=axis, keepdim=True, unbiased=False)
    return (x - m) / torch.sqrt(v + eps)

def _scatter_add(tgt, idx, src, axis=0):
    return tgt.clone().index_add_(axis, idx, src)

def _segment_sum(src, seg, n):
    out = torch.zeros((n,) + src.shape[1:], dtype=src.dtype)
    return out.index_add_(0, seg, src)

def _pad(x, pw):
    flat = tuple((v for pair in reversed(pw) for v in pair))
    return torch.nn.functional.pad(x, flat)
kernel_name = 'adaLN_cond__gqa_block_cached__mixer_gmlp__prompt'

def setup_inputs():

    _w = lambda a: (lambda t: t.to(torch.bfloat16) if t.is_floating_point() else t)(torch.as_tensor(a))

    def _A_setup():
        B, Sq, D = (1, 2048, 576)
        Hq, Hkv, Sk, Dh = (32, 16, 2048, 128)
        assert Hq % Hkv == 0, (Hq, Hkv)
        return {'x': _w((lambda *s: torch.randn(*s, dtype=torch.bfloat16) * 0.05)(B, Sq, D)), 'k_cache': _w((lambda *s: torch.randn(*s, dtype=torch.bfloat16) * 3.2)(B, Hkv, Sk, Dh)), 'v_cache': _w((lambda *s: torch.randn(*s, dtype=torch.bfloat16) * 0.4)(B, Hkv, Sk, Dh)), 'wq': _w((lambda *s: torch.randn(*s, dtype=torch.bfloat16) * 3.2)(D, Hq * Dh) * D ** (-0.5)), 'wo': _w((lambda *s: torch.randn(*s, dtype=torch.bfloat16) * 0.4)(Hq * Dh, D) * (Hq * Dh) ** (-0.5))}
    _A_in = _A_setup()

    def _B_setup():
        B, S, D, F = (1, 2048, 576, 4608)
        Fh = F // 2
        return {'x': _w((lambda *s: torch.randn(*s, dtype=torch.bfloat16) * 0.05)(B, S, D)), 'w_in': _w((lambda *s: torch.randn(*s, dtype=torch.bfloat16) * 1.6)(D, 2 * Fh)), 'w_sp': _w(0.01 * (lambda *s: torch.randn(*s, dtype=torch.bfloat16) * 1.6)(S, S)), 'b_sp': _w(1.0 + 0.01 * (lambda *s: torch.randn(*s, dtype=torch.bfloat16) * 0.05)(S)), 'w_out': _w((lambda *s: torch.randn(*s, dtype=torch.bfloat16) * 0.05)(Fh, D))}
    _B_in = _B_setup()
    return {'A_x': _A_in['x'], 'A_k_cache': _A_in['k_cache'], 'A_v_cache': _A_in['v_cache'], 'A_wq': _A_in['wq'], 'A_wo': _A_in['wo'], 'B_x': _B_in['x'], 'B_w_in': _B_in['w_in'], 'B_w_sp': _B_in['w_sp'], 'B_b_sp': _B_in['b_sp'], 'B_w_out': _B_in['w_out'], 'c': _w((lambda *s: torch.randn(*s, dtype=torch.bfloat16) * 0.2)(1, 576) * 8.0), 'w_mod': _w((lambda *s: torch.randn(*s, dtype=torch.bfloat16) * 0.2)(576, 6 * 576) * 576 ** (-0.5) * 8.0)}

def reference(A_x, A_k_cache, A_v_cache, A_wq, A_wo, B_x, B_w_in, B_w_sp, B_b_sp, B_w_out, c, w_mod):

    def _A_ref(x, k_cache, v_cache, wq, wo):
        B, Sq, D = x.shape
        Hq, Dh = (32, 128)
        Hkv = k_cache.shape[1]
        rep = Hq // Hkv
        q = (lambda x, *d: x.permute(*d))((x @ wq).reshape(B, Sq, Hq, Dh), 0, 2, 1, 3)
        k = (lambda x, n, axis: torch.repeat_interleave(x, n, dim=axis))(k_cache, rep, axis=1)
        v = (lambda x, n, axis: torch.repeat_interleave(x, n, dim=axis))(v_cache, rep, axis=1)
        scores = torch.einsum('bhqd,bhkd->bhqk', q, k) * Dh ** (-0.5)
        p = _softmax(scores, axis=-1)
        o = torch.einsum('bhqk,bhkd->bhqd', p, v)
        return (lambda x, *d: x.permute(*d))(o, 0, 2, 1, 3).reshape(B, Sq, Hq * Dh) @ wo

    def _B_ref(x, w_in, w_sp, b_sp, w_out):
        B, S, D = x.shape
        F = w_in.shape[-1]
        Fh = F // 2
        z = _gelu(torch.einsum('bsd,df->bsf', x, w_in))
        z1 = z[..., :Fh].clone()
        z2 = _layernorm(z[..., Fh:], axis=-1)
        g = torch.einsum('ts,bsf->btf', w_sp, z2) + b_sp[None, :, None]
        return torch.einsum('bsf,fd->bsd', z1 * g, w_out)
    x = A_x
    mod = (_silu(c) @ w_mod).reshape(c.shape[0], 6, 1, -1)
    sa, ca, ga, sb, cb, gb = (mod[:, 0].clone(), mod[:, 1].clone(), mod[:, 2].clone(), mod[:, 3].clone(), mod[:, 4].clone(), mod[:, 5].clone())
    h = _layernorm(x, axis=-1) * (1 + ca) + sa
    x = x + ga * _A_ref(h, A_k_cache, A_v_cache, A_wq, A_wo)
    h = _layernorm(x, axis=-1) * (1 + cb) + sb
    x = x + gb * _B_ref(h, B_w_in, B_w_sp, B_b_sp, B_w_out)
    return x
```

```python
class Asm:
    def __init__(self):
        self.lines = []
        self.lab = 0
    def __call__(self, s):
        for l in s.split('\n'):
            l = l.strip()
            if l:
                self.lines.append('    ' + l if not l.endswith(':') else l)
    def label(self, name):
        self.lines.append(name + ':')
    def newlabel(self, base='L'):
        self.lab += 1
        return f'{base}_{self.lab}'
    def comment(self, s):
        self.lines.append('    ; ' + s)
    def text(self):
        return '\n'.join(self.lines) + '\n'

def v(i, n=1):
    return f'v{i}' if n == 1 else f'v[{i}:{i+n-1}]'
def a(i, n=1):
    return f'a{i}' if n == 1 else f'a[{i}:{i+n-1}]'
def s(i, n=1):
    return f's{i}' if n == 1 else f's[{i}:{i+n-1}]'

def srd(A, d, base_lo, nbytes, off=None):
    if off is None:
        A(f's_mov_b32 s{d}, s{base_lo}')
        A(f's_mov_b32 s{d+1}, s{base_lo+1}')
    else:
        A(f's_add_u32 s{d}, s{base_lo}, {off}')
        A(f's_addc_u32 s{d+1}, s{base_lo+1}, 0')
    A(f's_mov_b32 s{d+2}, {nbytes}')
    A(f's_mov_b32 s{d+3}, 0x00020000')

def kernel_header(A, name):
    A.lines.append('.text')
    A.lines.append(f'.globl {name}')
    A.lines.append('.p2align 8')
    A.lines.append(f'.type {name},@function')
    A.lines.append(f'{name}:')

def kernel_desc(name, nvgpr, accum_offset, nsgpr=102):
    return f'''.section .rodata,"a"
.p2align 6
.amdhsa_kernel {name}
  .amdhsa_next_free_vgpr {nvgpr}
  .amdhsa_next_free_sgpr {nsgpr}
  .amdhsa_accum_offset {accum_offset}
  .amdhsa_group_segment_fixed_size 0
  .amdhsa_kernarg_size 120
  .amdhsa_user_sgpr_count 2
  .amdhsa_user_sgpr_kernarg_segment_ptr 1
  .amdhsa_system_sgpr_workgroup_id_x 1
.end_amdhsa_kernel
'''

KA_X, KA_K, KA_V, KA_WQ, KA_WO, KA_BX, KA_WIN, KA_WSP, KA_BSP, KA_WOUT, KA_C, KA_WMOD, KA_OUT, KA_DBG, KA_WS = [8*i for i in range(15)]

WS_MOD = 0
WS_O   = 1 << 20
WS_X1  = 20 << 20
WS_Z1  = 24 << 20
WS_Z2T = 36 << 20
WS_Z2N = 48 << 20
WS_ST  = 60 << 20
WS_U   = 64 << 20
WS_XH  = 76 << 20
WS_WSP = 80 << 20
WS_C   = 90 << 20
WS_XS  = 92 << 20
WS_ST1 = 96 << 20
WS_CS  = 97 << 20

def f32bits(x):
    import struct
    return struct.unpack('<I', struct.pack('<f', x))[0]
```

```python
from asmlib import *

def gen_k0(A, name='k0_mod_kernel'):
    NWG = 108
    kernel_header(A, name)
    A(f's_cmp_ge_u32 s2, {NWG}')
    A('s_cbranch_scc1 K0_ln')
    A(f's_load_dwordx2 s[4:5], s[0:1], {KA_C}')
    A(f's_load_dwordx2 s[6:7], s[0:1], {KA_WMOD}')
    A(f's_load_dwordx2 s[8:9], s[0:1], {KA_WS}')
    A('v_and_b32 v1, 3, v0')
    A('v_lshrrev_b32 v2, 2, v0')
    A('s_waitcnt lgkmcnt(0)')
    srd(A, 12, 4, 1152)
    srd(A, 16, 6, 576*3456*2)
    srd(A, 20, 8, 6*576*4, WS_MOD)
    A('s_mov_b32 s24, 6912')
    A('v_mul_lo_u32 v3, v2, s24')
    A('v_lshl_add_u32 v3, v1, 4, v3')
    A('s_lshl_b32 s25, s2, 6')
    A('v_add_u32 v3, s25, v3')
    A('v_lshlrev_b32 v4, 1, v2')
    for i in range(9):
        A(f's_mov_b32 s26, {i*64*6912}')
        A(f'buffer_load_dwordx4 {v(16+4*i,4)}, v3, s[16:19], s26 offen')
    for i in range(9):
        A(f'buffer_load_ushort v{5+i}, v4, s[12:15], 0 offen offset:{i*128}')
    for j in range(8):
        A(f'v_mov_b32 v{56+j}, 0')
    A('s_waitcnt vmcnt(0)')
    A('s_mov_b32 s27, 0xbfb8aa3b')
    for i in range(9):
        r = 5+i
        A(f'v_lshlrev_b32 v{r}, 16, v{r}')
        A(f'v_mul_f32 v64, s27, v{r}')
        A('v_exp_f32 v64, v64')
        A('s_nop 0')
        A('v_add_f32 v64, 1.0, v64')
        A('v_rcp_f32 v64, v64')
        A('s_nop 0')
        A(f'v_mul_f32 v64, v{r}, v64')
        A('v_cvt_pk_bf16_f32 v64, v64, v64')
        A(f'v_lshlrev_b32 v{r}, 16, v64')
    for i in range(9):
        for d in range(4):
            w = 16+4*i+d
            A(f'v_lshlrev_b32 v64, 16, v{w}')
            A(f'v_and_b32 v65, 0xffff0000, v{w}')
            A(f'v_fmac_f32 v{56+2*d}, v{5+i}, v64')
            A(f'v_fmac_f32 v{57+2*d}, v{5+i}, v65')
    A('s_nop 1')
    for j in range(8):
        A(f'v_add_f32_dpp v{56+j}, v{56+j}, v{56+j} row_ror:4 row_mask:0xf bank_mask:0xf')
    A('s_nop 1')
    for j in range(8):
        A(f'v_add_f32_dpp v{56+j}, v{56+j}, v{56+j} row_ror:8 row_mask:0xf bank_mask:0xf')
    A('v_lshrrev_b32 v66, 4, v0')
    A('v_lshlrev_b32 v66, 7, v66')
    A('v_lshl_add_u32 v66, v1, 5, v66')
    A('v_and_b32 v67, 15, v0')
    A('v_cmp_gt_u32 vcc, 4, v67')
    A('s_and_saveexec_b64 s[28:29], vcc')
    A('ds_write_b128 v66, v[56:59]')
    A('ds_write_b128 v66, v[60:63] offset:16')
    A('s_or_b64 exec, exec, s[28:29]')
    A('s_waitcnt lgkmcnt(0)')
    A('s_barrier')
    A('v_cmp_gt_u32 vcc, 32, v0')
    A('s_and_saveexec_b64 s[28:29], vcc')
    A('s_cbranch_execz K0_end')
    A('v_lshlrev_b32 v66, 2, v0')
    for i in range(16):
        A(f'ds_read_b32 v{16+i}, v66 offset:{i*128}')
    A('s_waitcnt lgkmcnt(0)')
    for st in [8,4,2,1]:
        for i in range(st):
            A(f'v_add_f32 v{16+i}, v{16+i}, v{16+i+st}')
    A('v_cvt_pk_bf16_f32 v16, v16, v16')
    A('v_lshlrev_b32 v16, 16, v16')
    A('v_add_f32 v17, 1.0, v16')
    A('v_cvt_pk_bf16_f32 v17, v17, v17')
    A('v_lshlrev_b32 v17, 16, v17')
    A('s_cmp_ge_u32 s2, 18')
    A('s_cselect_b32 s30, 1, 0')
    A('s_cmp_lt_u32 s2, 36')
    A('s_cselect_b32 s31, 1, 0')
    A('s_and_b32 s30, s30, s31')
    A('s_cmp_ge_u32 s2, 72')
    A('s_cselect_b32 s32, 1, 0')
    A('s_cmp_lt_u32 s2, 90')
    A('s_cselect_b32 s31, 1, 0')
    A('s_and_b32 s32, s32, s31')
    A('s_or_b32 s30, s30, s32')
    A('s_cmp_lg_u32 s30, 0')
    A('s_cbranch_scc0 K0_nop1')
    A('v_mov_b32 v16, v17')
    A.label('K0_nop1')
    A('s_lshl_b32 s25, s2, 7')
    A('buffer_store_dword v16, v66, s[20:23], s25 offen')
    A('s_waitcnt vmcnt(0)')
    A.label('K0_end')
    A('s_endpgm')
    A.label('K0_ln')
    A(f's_cmp_ge_u32 s2, {NWG+64}')
    A('s_cbranch_scc1 K0_end2')
    A(f's_load_dwordx2 s[4:5], s[0:1], {KA_X}')
    A(f's_load_dwordx2 s[8:9], s[0:1], {KA_WS}')
    A(f's_sub_u32 s3, s2, {NWG}')
    A('v_lshrrev_b32 v1, 3, v0')
    A('v_and_b32 v2, 7, v0')
    A('s_waitcnt lgkmcnt(0)')
    srd(A, 12, 4, 2048*1152)
    srd(A, 16, 8, 2048*1152, WS_XH)
    A('s_mov_b32 s24, 1152')
    A('v_mul_lo_u32 v3, v1, s24')
    A('v_lshl_add_u32 v3, v2, 4, v3')
    A(f's_mul_i32 s25, s3, {32*1152}')
    for i in range(9):
        A(f'buffer_load_dwordx4 {v(8+4*i,4)}, v3, s[12:15], s25 offen offset:{128*i}')
    A('v_lshrrev_b32 v4, 1, v2')
    A('v_lshlrev_b32 v4, 6, v4')
    A('v_and_b32 v5, 1, v2')
    A('v_lshl_add_u32 v4, v5, 5, v4')
    A('v_add_u32 v4, v4, v1')
    A('v_lshlrev_b32 v4, 4, v4')
    A('v_mov_b32 v6, 0')
    A('v_mov_b32 v7, 0')
    A('s_mov_b32 s26, 0x3f803f80')
    A('s_waitcnt vmcnt(0)')
    for i in range(36):
        A(f'v_dot2c_f32_bf16 v6, s26, v{8+i}')
        A(f'v_dot2c_f32_bf16 v7, v{8+i}, v{8+i}')
    A('s_nop 3')
    for pat in ['quad_perm:[1,0,3,2]', 'quad_perm:[2,3,0,1]', 'row_half_mirror']:
        A(f'v_add_f32_dpp v6, v6, v6 {pat} row_mask:0xf bank_mask:0xf')
        A(f'v_add_f32_dpp v7, v7, v7 {pat} row_mask:0xf bank_mask:0xf')
        A('s_nop 1')
    A(f's_mov_b32 s26, {f32bits(1.0/576)}')
    A('v_mul_f32 v6, s26, v6')
    A('v_mul_f32 v7, s26, v7')
    A('v_fma_f32 v7, -v6, v6, v7')
    A('v_max_f32 v7, 0, v7')
    A(f'v_add_f32 v7, {f32bits(1e-5)}, v7')
    A('v_rsq_f32 v7, v7')
    A('s_nop 0')
    A('v_mul_f32 v6, v6, v7')
    for i in range(36):
        r = 8+i
        A(f'v_lshlrev_b32 v44, 16, v{r}')
        A(f'v_and_b32 v45, 0xffff0000, v{r}')
        A('v_fma_f32 v44, v44, v7, -v6')
        A('v_fma_f32 v45, v45, v7, -v6')
        A(f'v_cvt_pk_bf16_f32 v{r}, v44, v45')
    A(f's_mul_i32 s25, s3, {36*1024}')
    for i in range(9):
        A(f'buffer_store_dwordx4 {v(8+4*i,4)}, v4, s[16:19], s25 offen')
        if i < 8: A('s_add_u32 s25, s25, 4096')
    A('s_waitcnt vmcnt(0)')
    A.label('K0_end2')
    A('s_endpgm')
    return dict(name=name, grid=NWG+64, block=256, lds=2048, nvgpr=72, accum=72)
```

```python
import sys, os
sys.path.insert(0, os.path.dirname(__file__))
from asmlib import *
import importlib

HEADER = open('adaLN_cond__gqa_block_cached__mixer_gmlp__prompt.s.ref').read().split('; Override launch')[0]

def build(kernels, out):
    A = Asm()
    infos = []
    for g in kernels:
        infos.append(g(A))
    txt = HEADER
    for i in infos:
        txt += f"; @launch kernel={i['name']} grid=({i['grid']},1,1) block=({i['block']},1,1) lds={i['lds']}\n"
    txt += '.amdgcn_target "amdgcn-amd-amdhsa--gfx950"\n'
    txt += A.text()
    txt += 'CODE_END:\n'
    for i in infos:
        txt += kernel_desc(i['name'], i['nvgpr'], i['accum'])
    open(out, 'w').write(txt)
    return infos

if __name__ == '__main__':
    from k0_mod import gen_k0
    ks = [gen_k0]
    for m, f in [('k1_attn','gen_k1'),('k2_gemm','gen_k2'),('k3_gemm','gen_k3'),('k4_gemm','gen_k4'),('k2_gemm','gen_k5')]:
        try:
            mod = importlib.import_module(m)
            ks.append(getattr(mod, f))
        except (ImportError, AttributeError) as e:
            print('skip', m, f, e)
    out = sys.argv[1] if len(sys.argv) > 1 else 'adaLN_cond__gqa_block_cached__mixer_gmlp__prompt.s'
    infos = build(ks, out)
    print([ (i['name'], i['grid'], i['block'], i['lds']) for i in infos])
```

```python
class Asm:
    def __init__(self):
        self.lines = []
        self.lab = 0
    def __call__(self, s):
        for l in s.split('\n'):
            l = l.strip()
            if l:
                self.lines.append('    ' + l if not l.endswith(':') else l)
    def label(self, name):
        self.lines.append(name + ':')
    def newlabel(self, base='L'):
        self.lab += 1
        return f'{base}_{self.lab}'
    def comment(self, s):
        self.lines.append('    ; ' + s)
    def text(self):
        return '\n'.join(self.lines) + '\n'

def v(i, n=1):
    return f'v{i}' if n == 1 else f'v[{i}:{i+n-1}]'
def a(i, n=1):
    return f'a{i}' if n == 1 else f'a[{i}:{i+n-1}]'
def s(i, n=1):
    return f's{i}' if n == 1 else f's[{i}:{i+n-1}]'

def srd(A, d, base_lo, nbytes, off=None):
    if off is None:
        A(f's_mov_b32 s{d}, s{base_lo}')
        A(f's_mov_b32 s{d+1}, s{base_lo+1}')
    else:
        A(f's_add_u32 s{d}, s{base_lo}, {off}')
        A(f's_addc_u32 s{d+1}, s{base_lo+1}, 0')
    A(f's_mov_b32 s{d+2}, {nbytes}')
    A(f's_mov_b32 s{d+3}, 0x00020000')

def kernel_header(A, name):
    A.lines.append('.text')
    A.lines.append(f'.globl {name}')
    A.lines.append('.p2align 8')
    A.lines.append(f'.type {name},@function')
    A.lines.append(f'{name}:')

def kernel_desc(name, nvgpr, accum_offset, nsgpr=102):
    return f'''.section .rodata,"a"
.p2align 6
.amdhsa_kernel {name}
  .amdhsa_next_free_vgpr {nvgpr}
  .amdhsa_next_free_sgpr {nsgpr}
  .amdhsa_accum_offset {accum_offset}
  .amdhsa_group_segment_fixed_size 0
  .amdhsa_kernarg_size 120
  .amdhsa_user_sgpr_count 2
  .amdhsa_user_sgpr_kernarg_segment_ptr 1
  .amdhsa_system_sgpr_workgroup_id_x 1
.end_amdhsa_kernel
'''

KA_X, KA_K, KA_V, KA_WQ, KA_WO, KA_BX, KA_WIN, KA_WSP, KA_BSP, KA_WOUT, KA_C, KA_WMOD, KA_OUT, KA_DBG, KA_WS = [8*i for i in range(15)]

WS_MOD = 0
WS_O   = 1 << 20
WS_X1  = 20 << 20
WS_Z1  = 24 << 20
WS_Z2T = 36 << 20
WS_Z2N = 48 << 20
WS_ST  = 60 << 20
WS_U   = 64 << 20
WS_XH  = 76 << 20
WS_WSP = 80 << 20
WS_C   = 90 << 20
WS_XS  = 92 << 20
WS_ST1 = 96 << 20
WS_CS  = 97 << 20

def f32bits(x):
    import struct
    return struct.unpack('<I', struct.pack('<f', x))[0]

import os as _os
STAMPWG = int(_os.environ.get('STAMP', '0'))
class Stamper:
    def __init__(self, A, base=62):
        self.A = A; self.base = base; self.n = 0
    def __call__(self):
        if STAMPWG:
            i = self.n; self.n += 1
            assert self.base + 2*i + 1 <= 97
            self.A(f's_memtime s[{self.base+2*i}:{self.base+2*i+1}]')
            if i == 0: self.A('s_memrealtime s[98:99]')
    def reset_to(self, n): self.n = n
    def finish(self, wave_sgpr='s3'):
        A = self.A
        if not STAMPWG: return
        self()
        A('s_memrealtime s[100:101]')
        lab = A.newlabel('ST_skip')
        A('s_mov_b64 exec, -1')
        A('s_waitcnt lgkmcnt(0)')
        A(f's_load_dwordx2 s[4:5], s[0:1], {KA_DBG}')
        A('s_waitcnt lgkmcnt(0)')
        srd(A, 12, 4, 256)
        A(f's_cmp_lg_u32 s2, {STAMPWG-1}')
        A(f's_cbranch_scc1 {lab}')
        A(f's_cmp_lg_u32 {wave_sgpr}, 0')
        A(f's_cbranch_scc1 {lab}')
        A('v_mov_b32 v3, 0')
        for i in range(1, self.n):
            A(f's_sub_u32 s6, s{self.base+2*i}, s{self.base}')
            A('v_mov_b32 v4, s6')
            A(f'buffer_store_dword v4, v3, s[12:15], 0 offen offset:{4*(i-1)}')
        A('s_sub_u32 s6, s100, s98')
        A('v_mov_b32 v4, s6')
        A(f'buffer_store_dword v4, v3, s[12:15], 0 offen offset:{4*(self.n-1)}')
        A('s_waitcnt vmcnt(0)')
        A.label(lab)
```

```python
from asmlib import *

def gen_k0(A, name='k0_mod_kernel'):
    NWG = 108
    kernel_header(A, name)
    A(f's_cmp_ge_u32 s2, {NWG}')
    A('s_cbranch_scc1 K0_ln')
    A(f's_load_dwordx2 s[4:5], s[0:1], {KA_C}')
    A(f's_load_dwordx2 s[6:7], s[0:1], {KA_WMOD}')
    A(f's_load_dwordx2 s[8:9], s[0:1], {KA_WS}')
    A('v_and_b32 v1, 3, v0')
    A('v_lshrrev_b32 v2, 2, v0')
    A('s_waitcnt lgkmcnt(0)')
    srd(A, 12, 4, 1152)
    srd(A, 16, 6, 576*3456*2)
    srd(A, 20, 8, 8*576*4, WS_MOD)
    A('s_mov_b32 s24, 6912')
    A('v_mul_lo_u32 v3, v2, s24')
    A('v_lshl_add_u32 v3, v1, 4, v3')
    A('s_lshl_b32 s25, s2, 6')
    A('v_add_u32 v3, s25, v3')
    A('v_lshlrev_b32 v4, 1, v2')
    for i in range(9):
        A(f's_mov_b32 s26, {i*64*6912}')
        A(f'buffer_load_dwordx4 {v(16+4*i,4)}, v3, s[16:19], s26 offen')
    for i in range(9):
        A(f'buffer_load_ushort v{5+i}, v4, s[12:15], 0 offen offset:{i*128}')
    for j in range(8):
        A(f'v_mov_b32 v{56+j}, 0')
    A('s_waitcnt vmcnt(0)')
    A('s_mov_b32 s27, 0xbfb8aa3b')
    for i in range(9):
        r = 5+i
        A(f'v_lshlrev_b32 v{r}, 16, v{r}')
        A(f'v_mul_f32 v64, s27, v{r}')
        A('v_exp_f32 v64, v64')
        A('s_nop 0')
        A('v_add_f32 v64, 1.0, v64')
        A('v_rcp_f32 v64, v64')
        A('s_nop 0')
        A(f'v_mul_f32 v64, v{r}, v64')
        A('v_cvt_pk_bf16_f32 v64, v64, v64')
        A(f'v_lshlrev_b32 v{r}, 16, v64')
    for i in range(9):
        for d in range(4):
            w = 16+4*i+d
            A(f'v_lshlrev_b32 v64, 16, v{w}')
            A(f'v_and_b32 v65, 0xffff0000, v{w}')
            A(f'v_fmac_f32 v{56+2*d}, v{5+i}, v64')
            A(f'v_fmac_f32 v{57+2*d}, v{5+i}, v65')
    A('s_nop 1')
    for j in range(8):
        A(f'v_add_f32_dpp v{56+j}, v{56+j}, v{56+j} row_ror:4 row_mask:0xf bank_mask:0xf')
    A('s_nop 1')
    for j in range(8):
        A(f'v_add_f32_dpp v{56+j}, v{56+j}, v{56+j} row_ror:8 row_mask:0xf bank_mask:0xf')
    A('v_lshrrev_b32 v66, 4, v0')
    A('v_lshlrev_b32 v66, 7, v66')
    A('v_lshl_add_u32 v66, v1, 5, v66')
    A('v_and_b32 v67, 15, v0')
    A('v_cmp_gt_u32 vcc, 4, v67')
    A('s_and_saveexec_b64 s[28:29], vcc')
    A('ds_write_b128 v66, v[56:59]')
    A('ds_write_b128 v66, v[60:63] offset:16')
    A('s_or_b64 exec, exec, s[28:29]')
    A('s_waitcnt lgkmcnt(0)')
    A('s_barrier')
    A('v_cmp_gt_u32 vcc, 32, v0')
    A('s_and_saveexec_b64 s[28:29], vcc')
    A('s_cbranch_execz K0_end')
    A('v_lshlrev_b32 v66, 2, v0')
    for i in range(16):
        A(f'ds_read_b32 v{16+i}, v66 offset:{i*128}')
    A('s_waitcnt lgkmcnt(0)')
    for st in [8,4,2,1]:
        for i in range(st):
            A(f'v_add_f32 v{16+i}, v{16+i}, v{16+i+st}')
    A('v_cvt_pk_bf16_f32 v16, v16, v16')
    A('v_lshlrev_b32 v16, 16, v16')
    A('v_add_f32 v17, 1.0, v16')
    A('v_cvt_pk_bf16_f32 v17, v17, v17')
    A('v_lshlrev_b32 v17, 16, v17')
    A('s_cmp_ge_u32 s2, 18')
    A('s_cselect_b32 s30, 1, 0')
    A('s_cmp_lt_u32 s2, 36')
    A('s_cselect_b32 s31, 1, 0')
    A('s_and_b32 s30, s30, s31')
    A('s_cmp_ge_u32 s2, 72')
    A('s_cselect_b32 s32, 1, 0')
    A('s_cmp_lt_u32 s2, 90')
    A('s_cselect_b32 s31, 1, 0')
    A('s_and_b32 s32, s32, s31')
    A('s_or_b32 s30, s30, s32')
    A('s_cmp_lg_u32 s30, 0')
    A('s_cbranch_scc0 K0_nop1')
    A('v_mov_b32 v16, v17')
    A.label('K0_nop1')
    A('s_lshl_b32 s25, s2, 7')
    A('buffer_store_dword v16, v66, s[20:23], s25 offen')
    A('s_cmp_ge_u32 s2, 36')
    A('s_cbranch_scc1 K0_noq')
    A(f's_mov_b32 s30, {f32bits((128**-0.5) * 1.4426950408889634)}')
    A('v_mul_f32 v17, s30, v16')
    A(f's_add_u32 s25, s25, {6*2304}')
    A('buffer_store_dword v17, v66, s[20:23], s25 offen')
    A.label('K0_noq')
    A('s_waitcnt vmcnt(0)')
    A.label('K0_end')
    A('s_endpgm')
    A.label('K0_ln')
    A(f's_cmp_ge_u32 s2, {NWG+64}')
    A('s_cbranch_scc1 K0_end2')
    A(f's_load_dwordx2 s[4:5], s[0:1], {KA_X}')
    A(f's_load_dwordx2 s[8:9], s[0:1], {KA_WS}')
    A(f's_sub_u32 s3, s2, {NWG}')
    A('v_lshrrev_b32 v1, 3, v0')
    A('v_and_b32 v2, 7, v0')
    A('s_waitcnt lgkmcnt(0)')
    srd(A, 12, 4, 2048*1152)
    srd(A, 16, 8, 2048*1152, WS_XH)
    A('s_mov_b32 s24, 1152')
    A('v_mul_lo_u32 v3, v1, s24')
    A('v_lshl_add_u32 v3, v2, 4, v3')
    A(f's_mul_i32 s25, s3, {32*1152}')
    for i in range(9):
        A(f'buffer_load_dwordx4 {v(8+4*i,4)}, v3, s[12:15], s25 offen offset:{128*i}')
    A('v_lshrrev_b32 v4, 4, v1')
    A('v_mul_u32_u24 v4, 18, v4')
    A('v_lshrrev_b32 v5, 2, v2')
    A('v_add_u32 v4, v4, v5')
    A('v_lshlrev_b32 v4, 10, v4')
    A('v_and_b32 v5, 3, v2')
    A('v_lshl_add_u32 v4, v5, 8, v4')
    A('v_and_b32 v5, 15, v1')
    A('v_lshl_add_u32 v4, v5, 4, v4')
    A('v_mov_b32 v6, 0')
    A('v_mov_b32 v7, 0')
    A('s_mov_b32 s26, 0x3f803f80')
    A('s_waitcnt vmcnt(0)')
    for i in range(36):
        A(f'v_dot2c_f32_bf16 v6, s26, v{8+i}')
        A(f'v_dot2c_f32_bf16 v7, v{8+i}, v{8+i}')
    A('s_nop 3')
    for pat in ['quad_perm:[1,0,3,2]', 'quad_perm:[2,3,0,1]', 'row_half_mirror']:
        A(f'v_add_f32_dpp v6, v6, v6 {pat} row_mask:0xf bank_mask:0xf')
        A(f'v_add_f32_dpp v7, v7, v7 {pat} row_mask:0xf bank_mask:0xf')
        A('s_nop 1')
    A(f's_mov_b32 s26, {f32bits(1.0/576)}')
    A('v_mul_f32 v6, s26, v6')
    A('v_mul_f32 v7, s26, v7')
    A('v_fma_f32 v7, -v6, v6, v7')
    A('v_max_f32 v7, 0, v7')
    A(f'v_add_f32 v7, {f32bits(1e-5)}, v7')
    A('v_rsq_f32 v7, v7')
    A('s_nop 0')
    A('v_mul_f32 v6, v6, v7')
    for i in range(36):
        r = 8+i
        A(f'v_lshlrev_b32 v44, 16, v{r}')
        A(f'v_and_b32 v45, 0xffff0000, v{r}')
        A('v_fma_f32 v44, v44, v7, -v6')
        A('v_fma_f32 v45, v45, v7, -v6')
        A(f'v_cvt_pk_bf16_f32 v{r}, v44, v45')
    A(f's_mul_i32 s25, s3, {36*1024}')
    for i in range(9):
        A(f'buffer_store_dwordx4 {v(8+4*i,4)}, v4, s[16:19], s25 offen')
        if i < 8: A('s_add_u32 s25, s25, 2048')
    A('s_waitcnt vmcnt(0)')
    A.label('K0_end2')
    A('s_endpgm')
    return dict(name=name, grid=NWG+64, block=256, lds=2048, nvgpr=72, accum=72)
```

```python
from asmlib import *

def gen_k0(A, name='k0_mod_kernel'):
    NWG = 108
    import os
    NPF = int(os.environ.get('NPF','12'))
    kernel_header(A, name)
    A(f's_cmp_ge_u32 s2, {NWG}')
    A('s_cbranch_scc1 K0_ln')
    A(f's_load_dwordx2 s[4:5], s[0:1], {KA_C}')
    A(f's_load_dwordx2 s[6:7], s[0:1], {KA_WMOD}')
    A(f's_load_dwordx2 s[8:9], s[0:1], {KA_WS}')
    A('v_and_b32 v1, 3, v0')
    A('v_lshrrev_b32 v2, 2, v0')
    A('s_waitcnt lgkmcnt(0)')
    srd(A, 12, 4, 1152)
    srd(A, 16, 6, 576*3456*2)
    srd(A, 20, 8, 8*576*4, WS_MOD)
    A('s_mov_b32 s24, 6912')
    A('v_mul_lo_u32 v3, v2, s24')
    A('v_lshl_add_u32 v3, v1, 4, v3')
    A('s_lshl_b32 s25, s2, 6')
    A('v_add_u32 v3, s25, v3')
    A('v_lshlrev_b32 v4, 1, v2')
    for i in range(9):
        A(f's_mov_b32 s26, {i*64*6912}')
        A(f'buffer_load_dwordx4 {v(16+4*i,4)}, v3, s[16:19], s26 offen')
    for i in range(9):
        A(f'buffer_load_ushort v{5+i}, v4, s[12:15], 0 offen offset:{i*128}')
    for j in range(8):
        A(f'v_mov_b32 v{56+j}, 0')
    A('s_waitcnt vmcnt(0)')
    A('s_mov_b32 s27, 0xbfb8aa3b')
    for i in range(9):
        r = 5+i
        A(f'v_lshlrev_b32 v{r}, 16, v{r}')
        A(f'v_mul_f32 v64, s27, v{r}')
        A('v_exp_f32 v64, v64')
        A('s_nop 0')
        A('v_add_f32 v64, 1.0, v64')
        A('v_rcp_f32 v64, v64')
        A('s_nop 0')
        A(f'v_mul_f32 v64, v{r}, v64')
        A('v_cvt_pk_bf16_f32 v64, v64, v64')
        A(f'v_lshlrev_b32 v{r}, 16, v64')
    for i in range(9):
        for d in range(4):
            w = 16+4*i+d
            A(f'v_lshlrev_b32 v64, 16, v{w}')
            A(f'v_and_b32 v65, 0xffff0000, v{w}')
            A(f'v_fmac_f32 v{56+2*d}, v{5+i}, v64')
            A(f'v_fmac_f32 v{57+2*d}, v{5+i}, v65')
    A('s_nop 1')
    for j in range(8):
        A(f'v_add_f32_dpp v{56+j}, v{56+j}, v{56+j} row_ror:4 row_mask:0xf bank_mask:0xf')
    A('s_nop 1')
    for j in range(8):
        A(f'v_add_f32_dpp v{56+j}, v{56+j}, v{56+j} row_ror:8 row_mask:0xf bank_mask:0xf')
    A('v_lshrrev_b32 v66, 4, v0')
    A('v_lshlrev_b32 v66, 7, v66')
    A('v_lshl_add_u32 v66, v1, 5, v66')
    A('v_and_b32 v67, 15, v0')
    A('v_cmp_gt_u32 vcc, 4, v67')
    A('s_and_saveexec_b64 s[28:29], vcc')
    A('ds_write_b128 v66, v[56:59]')
    A('ds_write_b128 v66, v[60:63] offset:16')
    A('s_or_b64 exec, exec, s[28:29]')
    A('s_waitcnt lgkmcnt(0)')
    A('s_barrier')
    A('v_cmp_gt_u32 vcc, 32, v0')
    A('s_and_saveexec_b64 s[28:29], vcc')
    A('s_cbranch_execz K0_end')
    A('v_lshlrev_b32 v66, 2, v0')
    for i in range(16):
        A(f'ds_read_b32 v{16+i}, v66 offset:{i*128}')
    A('s_waitcnt lgkmcnt(0)')
    for st in [8,4,2,1]:
        for i in range(st):
            A(f'v_add_f32 v{16+i}, v{16+i}, v{16+i+st}')
    A('v_cvt_pk_bf16_f32 v16, v16, v16')
    A('v_lshlrev_b32 v16, 16, v16')
    A('v_add_f32 v17, 1.0, v16')
    A('v_cvt_pk_bf16_f32 v17, v17, v17')
    A('v_lshlrev_b32 v17, 16, v17')
    A('s_cmp_ge_u32 s2, 18')
    A('s_cselect_b32 s30, 1, 0')
    A('s_cmp_lt_u32 s2, 36')
    A('s_cselect_b32 s31, 1, 0')
    A('s_and_b32 s30, s30, s31')
    A('s_cmp_ge_u32 s2, 72')
    A('s_cselect_b32 s32, 1, 0')
    A('s_cmp_lt_u32 s2, 90')
    A('s_cselect_b32 s31, 1, 0')
    A('s_and_b32 s32, s32, s31')
    A('s_or_b32 s30, s30, s32')
    A('s_cmp_lg_u32 s30, 0')
    A('s_cbranch_scc0 K0_nop1')
    A('v_mov_b32 v16, v17')
    A.label('K0_nop1')
    A('s_lshl_b32 s25, s2, 7')
    A('buffer_store_dword v16, v66, s[20:23], s25 offen')
    A('s_cmp_ge_u32 s2, 36')
    A('s_cbranch_scc1 K0_noq')
    A(f's_mov_b32 s30, {f32bits((128**-0.5) * 1.4426950408889634)}')
    A('v_mul_f32 v17, s30, v16')
    A(f's_add_u32 s25, s25, {6*2304}')
    A('buffer_store_dword v17, v66, s[20:23], s25 offen')
    A.label('K0_noq')
    A('s_waitcnt vmcnt(0)')
    A.label('K0_end')
    A('s_endpgm')
    A.label('K0_ln')
    A(f's_cmp_ge_u32 s2, {NWG+64}')
    A('s_cbranch_scc1 K0_cpf')
    A(f's_load_dwordx2 s[4:5], s[0:1], {KA_X}')
    A(f's_load_dwordx2 s[8:9], s[0:1], {KA_WS}')
    A(f's_sub_u32 s3, s2, {NWG}')
    A('v_lshrrev_b32 v1, 3, v0')
    A('v_and_b32 v2, 7, v0')
    A('s_waitcnt lgkmcnt(0)')
    srd(A, 12, 4, 2048*1152)
    srd(A, 16, 8, 2048*1152, WS_XH)
    A('s_mov_b32 s24, 1152')
    A('v_mul_lo_u32 v3, v1, s24')
    A('v_lshl_add_u32 v3, v2, 4, v3')
    A(f's_mul_i32 s25, s3, {32*1152}')
    for i in range(9):
        A(f'buffer_load_dwordx4 {v(8+4*i,4)}, v3, s[12:15], s25 offen offset:{128*i}')
    A('v_lshrrev_b32 v4, 4, v1')
    A('v_mul_u32_u24 v4, 18, v4')
    A('v_lshrrev_b32 v5, 2, v2')
    A('v_add_u32 v4, v4, v5')
    A('v_lshlrev_b32 v4, 10, v4')
    A('v_and_b32 v5, 3, v2')
    A('v_lshl_add_u32 v4, v5, 8, v4')
    A('v_and_b32 v5, 15, v1')
    A('v_lshl_add_u32 v4, v5, 4, v4')
    A('v_mov_b32 v6, 0')
    A('v_mov_b32 v7, 0')
    A('s_mov_b32 s26, 0x3f803f80')
    A('s_waitcnt vmcnt(0)')
    for i in range(36):
        A(f'v_dot2c_f32_bf16 v6, s26, v{8+i}')
        A(f'v_dot2c_f32_bf16 v7, v{8+i}, v{8+i}')
    A('s_nop 3')
    for pat in ['quad_perm:[1,0,3,2]', 'quad_perm:[2,3,0,1]', 'row_half_mirror']:
        A(f'v_add_f32_dpp v6, v6, v6 {pat} row_mask:0xf bank_mask:0xf')
        A(f'v_add_f32_dpp v7, v7, v7 {pat} row_mask:0xf bank_mask:0xf')
        A('s_nop 1')
    A(f's_mov_b32 s26, {f32bits(1.0/576)}')
    A('v_mul_f32 v6, s26, v6')
    A('v_mul_f32 v7, s26, v7')
    A('v_fma_f32 v7, -v6, v6, v7')
    A('v_max_f32 v7, 0, v7')
    A(f'v_add_f32 v7, {f32bits(1e-5)}, v7')
    A('v_rsq_f32 v7, v7')
    A('s_nop 0')
    A('v_mul_f32 v6, v6, v7')
    for i in range(36):
        r = 8+i
        A(f'v_lshlrev_b32 v44, 16, v{r}')
        A(f'v_and_b32 v45, 0xffff0000, v{r}')
        A('v_fma_f32 v44, v44, v7, -v6')
        A('v_fma_f32 v45, v45, v7, -v6')
        A(f'v_cvt_pk_bf16_f32 v{r}, v44, v45')
    A(f's_mul_i32 s25, s3, {36*1024}')
    for i in range(9):
        A(f'buffer_store_dwordx4 {v(8+4*i,4)}, v4, s[16:19], s25 offen sc0 sc1')
        if i < 8: A('s_add_u32 s25, s25, 2048')
    A('s_waitcnt vmcnt(0)')
    A.label('K0_end2')
    A('s_endpgm')
    A.label('K0_cpf')
    A(f's_cmp_ge_u32 s2, {NWG+64+NPF}')
    A('s_cbranch_scc1 K0_end3')
    A('s_getpc_b64 s[4:5]')
    A.label('K0_pcref')
    A(f's_sub_u32 s3, s2, {NWG+64}')
    A('s_lshl_b32 s3, s3, 14')
    A('s_add_u32 s3, s3, k1_attn_kernel-K0_pcref')
    A('s_add_u32 s4, s4, s3')
    A('s_addc_u32 s5, s5, 0')
    A('v_lshlrev_b32 v1, 4, v0')
    A(f's_sub_u32 s6, s2, {NWG+64}')
    A('s_lshl_b32 s6, s6, 14')
    for i in range(4):
        A(f'v_add_u32 v2, {4096*i}, v1')
        A('v_add_u32 v3, s6, v2')
        A('v_cmp_gt_u32 vcc, CODE_END-k1_attn_kernel-16, v3')
        A('s_and_saveexec_b64 s[8:9], vcc')
        A(f's_cbranch_execz K0_cskip{i}')
        A(f'global_load_dwordx4 {v(8+4*i,4)}, v2, s[4:5]')
        A.label(f'K0_cskip{i}')
        A('s_or_b64 exec, exec, s[8:9]')
    A('s_waitcnt vmcnt(0)')
    A.label('K0_end3')
    A('s_endpgm')
    return dict(name=name, grid=NWG+64+NPF, block=256, lds=2048, nvgpr=72, accum=72)
```

```python
from asmlib import *

def gen_k0(A, name='k0_mod_kernel'):
    NWG = 108
    import os
    NPF = int(os.environ.get('NPF','12'))
    NDP = int(os.environ.get('NDP','136'))
    kernel_header(A, name)
    A(f's_cmp_ge_u32 s2, {NWG}')
    A('s_cbranch_scc1 K0_ln')
    A(f's_load_dwordx2 s[4:5], s[0:1], {KA_C}')
    A(f's_load_dwordx2 s[6:7], s[0:1], {KA_WMOD}')
    A(f's_load_dwordx2 s[8:9], s[0:1], {KA_WS}')
    A('v_and_b32 v1, 3, v0')
    A('v_lshrrev_b32 v2, 2, v0')
    A('s_waitcnt lgkmcnt(0)')
    srd(A, 12, 4, 1152)
    srd(A, 16, 6, 576*3456*2)
    srd(A, 20, 8, 8*576*4, WS_MOD)
    A('s_mov_b32 s24, 6912')
    A('v_mul_lo_u32 v3, v2, s24')
    A('v_lshl_add_u32 v3, v1, 4, v3')
    A('s_lshl_b32 s25, s2, 6')
    A('v_add_u32 v3, s25, v3')
    A('v_lshlrev_b32 v4, 1, v2')
    for i in range(9):
        A(f's_mov_b32 s26, {i*64*6912}')
        A(f'buffer_load_dwordx4 {v(16+4*i,4)}, v3, s[16:19], s26 offen')
    for i in range(9):
        A(f'buffer_load_ushort v{5+i}, v4, s[12:15], 0 offen offset:{i*128}')
    for j in range(8):
        A(f'v_mov_b32 v{56+j}, 0')
    A('s_waitcnt vmcnt(0)')
    A('s_mov_b32 s27, 0xbfb8aa3b')
    for i in range(9):
        r = 5+i
        A(f'v_lshlrev_b32 v{r}, 16, v{r}')
        A(f'v_mul_f32 v64, s27, v{r}')
        A('v_exp_f32 v64, v64')
        A('s_nop 0')
        A('v_add_f32 v64, 1.0, v64')
        A('v_rcp_f32 v64, v64')
        A('s_nop 0')
        A(f'v_mul_f32 v64, v{r}, v64')
        A('v_cvt_pk_bf16_f32 v64, v64, v64')
        A(f'v_lshlrev_b32 v{r}, 16, v64')
    for i in range(9):
        for d in range(4):
            w = 16+4*i+d
            A(f'v_lshlrev_b32 v64, 16, v{w}')
            A(f'v_and_b32 v65, 0xffff0000, v{w}')
            A(f'v_fmac_f32 v{56+2*d}, v{5+i}, v64')
            A(f'v_fmac_f32 v{57+2*d}, v{5+i}, v65')
    A('s_nop 1')
    for j in range(8):
        A(f'v_add_f32_dpp v{56+j}, v{56+j}, v{56+j} row_ror:4 row_mask:0xf bank_mask:0xf')
    A('s_nop 1')
    for j in range(8):
        A(f'v_add_f32_dpp v{56+j}, v{56+j}, v{56+j} row_ror:8 row_mask:0xf bank_mask:0xf')
    A('v_lshrrev_b32 v66, 4, v0')
    A('v_lshlrev_b32 v66, 7, v66')
    A('v_lshl_add_u32 v66, v1, 5, v66')
    A('v_and_b32 v67, 15, v0')
    A('v_cmp_gt_u32 vcc, 4, v67')
    A('s_and_saveexec_b64 s[28:29], vcc')
    A('ds_write_b128 v66, v[56:59]')
    A('ds_write_b128 v66, v[60:63] offset:16')
    A('s_or_b64 exec, exec, s[28:29]')
    A('s_waitcnt lgkmcnt(0)')
    A('s_barrier')
    A('v_cmp_gt_u32 vcc, 32, v0')
    A('s_and_saveexec_b64 s[28:29], vcc')
    A('s_cbranch_execz K0_end')
    A('v_lshlrev_b32 v66, 2, v0')
    for i in range(16):
        A(f'ds_read_b32 v{16+i}, v66 offset:{i*128}')
    A('s_waitcnt lgkmcnt(0)')
    for st in [8,4,2,1]:
        for i in range(st):
            A(f'v_add_f32 v{16+i}, v{16+i}, v{16+i+st}')
    A('v_cvt_pk_bf16_f32 v16, v16, v16')
    A('v_lshlrev_b32 v16, 16, v16')
    A('v_add_f32 v17, 1.0, v16')
    A('v_cvt_pk_bf16_f32 v17, v17, v17')
    A('v_lshlrev_b32 v17, 16, v17')
    A('s_cmp_ge_u32 s2, 18')
    A('s_cselect_b32 s30, 1, 0')
    A('s_cmp_lt_u32 s2, 36')
    A('s_cselect_b32 s31, 1, 0')
    A('s_and_b32 s30, s30, s31')
    A('s_cmp_ge_u32 s2, 72')
    A('s_cselect_b32 s32, 1, 0')
    A('s_cmp_lt_u32 s2, 90')
    A('s_cselect_b32 s31, 1, 0')
    A('s_and_b32 s32, s32, s31')
    A('s_or_b32 s30, s30, s32')
    A('s_cmp_lg_u32 s30, 0')
    A('s_cbranch_scc0 K0_nop1')
    A('v_mov_b32 v16, v17')
    A.label('K0_nop1')
    A('s_lshl_b32 s25, s2, 7')
    A('buffer_store_dword v16, v66, s[20:23], s25 offen')
    A('s_cmp_ge_u32 s2, 36')
    A('s_cbranch_scc1 K0_noq')
    A(f's_mov_b32 s30, {f32bits((128**-0.5) * 1.4426950408889634)}')
    A('v_mul_f32 v17, s30, v16')
    A(f's_add_u32 s25, s25, {6*2304}')
    A('buffer_store_dword v17, v66, s[20:23], s25 offen')
    A.label('K0_noq')
    A('s_waitcnt vmcnt(0)')
    A.label('K0_end')
    A('s_endpgm')
    A.label('K0_ln')
    A(f's_cmp_ge_u32 s2, {NWG+64}')
    A('s_cbranch_scc1 K0_cpf')
    A(f's_load_dwordx2 s[4:5], s[0:1], {KA_X}')
    A(f's_load_dwordx2 s[8:9], s[0:1], {KA_WS}')
    A(f's_sub_u32 s3, s2, {NWG}')
    A('v_lshrrev_b32 v1, 3, v0')
    A('v_and_b32 v2, 7, v0')
    A('s_waitcnt lgkmcnt(0)')
    srd(A, 12, 4, 2048*1152)
    srd(A, 16, 8, 2048*1152, WS_XH)
    A('s_mov_b32 s24, 1152')
    A('v_mul_lo_u32 v3, v1, s24')
    A('v_lshl_add_u32 v3, v2, 4, v3')
    A(f's_mul_i32 s25, s3, {32*1152}')
    for i in range(9):
        A(f'buffer_load_dwordx4 {v(8+4*i,4)}, v3, s[12:15], s25 offen offset:{128*i}')
    A('v_lshrrev_b32 v4, 4, v1')
    A('v_mul_u32_u24 v4, 18, v4')
    A('v_lshrrev_b32 v5, 2, v2')
    A('v_add_u32 v4, v4, v5')
    A('v_lshlrev_b32 v4, 10, v4')
    A('v_and_b32 v5, 3, v2')
    A('v_lshl_add_u32 v4, v5, 8, v4')
    A('v_and_b32 v5, 15, v1')
    A('v_lshl_add_u32 v4, v5, 4, v4')
    A('v_mov_b32 v6, 0')
    A('v_mov_b32 v7, 0')
    A('s_mov_b32 s26, 0x3f803f80')
    A('s_waitcnt vmcnt(0)')
    for i in range(36):
        A(f'v_dot2c_f32_bf16 v6, s26, v{8+i}')
        A(f'v_dot2c_f32_bf16 v7, v{8+i}, v{8+i}')
    A('s_nop 3')
    for pat in ['quad_perm:[1,0,3,2]', 'quad_perm:[2,3,0,1]', 'row_half_mirror']:
        A(f'v_add_f32_dpp v6, v6, v6 {pat} row_mask:0xf bank_mask:0xf')
        A(f'v_add_f32_dpp v7, v7, v7 {pat} row_mask:0xf bank_mask:0xf')
        A('s_nop 1')
    A(f's_mov_b32 s26, {f32bits(1.0/576)}')
    A('v_mul_f32 v6, s26, v6')
    A('v_mul_f32 v7, s26, v7')
    A('v_fma_f32 v7, -v6, v6, v7')
    A('v_max_f32 v7, 0, v7')
    A(f'v_add_f32 v7, {f32bits(1e-5)}, v7')
    A('v_rsq_f32 v7, v7')
    A('s_nop 0')
    A('v_mul_f32 v6, v6, v7')
    for i in range(36):
        r = 8+i
        A(f'v_lshlrev_b32 v44, 16, v{r}')
        A(f'v_and_b32 v45, 0xffff0000, v{r}')
        A('v_fma_f32 v44, v44, v7, -v6')
        A('v_fma_f32 v45, v45, v7, -v6')
        A(f'v_cvt_pk_bf16_f32 v{r}, v44, v45')
    A(f's_mul_i32 s25, s3, {36*1024}')
    for i in range(9):
        A(f'buffer_store_dwordx4 {v(8+4*i,4)}, v4, s[16:19], s25 offen sc0 sc1')
        if i < 8: A('s_add_u32 s25, s25, 2048')
    A('s_waitcnt vmcnt(0)')
    A.label('K0_end2')
    A('s_endpgm')
    A.label('K0_cpf')
    A(f's_cmp_ge_u32 s2, {NWG+64+NPF}')
    A('s_cbranch_scc1 K0_dpf')
    A('s_getpc_b64 s[4:5]')
    A.label('K0_pcref')
    A(f's_sub_u32 s3, s2, {NWG+64}')
    A('s_lshl_b32 s3, s3, 14')
    A('s_add_u32 s3, s3, k1_attn_kernel-K0_pcref')
    A('s_add_u32 s4, s4, s3')
    A('s_addc_u32 s5, s5, 0')
    A('v_lshlrev_b32 v1, 4, v0')
    A(f's_sub_u32 s6, s2, {NWG+64}')
    A('s_lshl_b32 s6, s6, 14')
    for i in range(4):
        A(f'v_add_u32 v2, {4096*i}, v1')
        A('v_add_u32 v3, s6, v2')
        A('v_cmp_gt_u32 vcc, CODE_END-k1_attn_kernel-16, v3')
        A('s_and_saveexec_b64 s[8:9], vcc')
        A(f's_cbranch_execz K0_cskip{i}')
        A(f'global_load_dwordx4 {v(8+4*i,4)}, v2, s[4:5]')
        A.label(f'K0_cskip{i}')
        A('s_or_b64 exec, exec, s[8:9]')
    A('s_waitcnt vmcnt(0)')
    A.label('K0_end3')
    A('s_endpgm')
    A.label('K0_dpf')
    B0 = NWG+64+NPF
    A(f's_cmp_ge_u32 s2, {B0+NDP}')
    A('s_cbranch_scc1 K0_end4')
    A(f's_load_dwordx2 s[4:5], s[0:1], {KA_WQ}')
    A(f's_load_dwordx2 s[6:7], s[0:1], {KA_K}')
    A(f's_load_dwordx2 s[8:9], s[0:1], {KA_V}')
    A(f's_sub_u32 s3, s2, {B0}')
    A('v_lshlrev_b32 v1, 4, v0')
    A('s_waitcnt lgkmcnt(0)')
    srd(A, 12, 4, 576*8192)
    srd(A, 16, 6, 16*524288)
    srd(A, 20, 8, 16*524288)
    A('s_cmp_ge_u32 s3, 72')
    A('s_cbranch_scc1 K0_dkv')
    A('s_lshl_b32 s24, s3, 16')
    for i in range(16):
        A(f'buffer_load_dwordx4 {v(4+4*i,4)}, v1, s[12:15], s24 offen')
        A('s_add_u32 s24, s24, 4096')
    A('s_waitcnt vmcnt(0)')
    A('s_endpgm')
    A.label('K0_dkv')
    A('s_sub_u32 s3, s3, 72')
    A('s_and_b32 s24, s3, 15')
    A('s_lshl_b32 s24, s24, 19')
    A('s_lshr_b32 s25, s3, 4')
    A('s_lshl_b32 s25, s25, 15')
    A('s_add_u32 s24, s24, s25')
    for i in range(8):
        A(f'buffer_load_dwordx4 {v(4+8*i,4)}, v1, s[16:19], s24 offen')
        A(f'buffer_load_dwordx4 {v(8+8*i,4)}, v1, s[20:23], s24 offen')
        A('s_add_u32 s24, s24, 4096')
    A('s_waitcnt vmcnt(0)')
    A.label('K0_end4')
    A('s_endpgm')
    return dict(name=name, grid=NWG+64+NPF+NDP, block=256, lds=2048, nvgpr=72, accum=72)
```

```python
from asmlib import *

def gen_k0(A, name='k0_mod_kernel'):
    NWG = 108
    import os
    NPF = int(os.environ.get('NPF','12'))
    NDP = int(os.environ.get('NDP','136'))
    kernel_header(A, name)
    A(f's_cmp_ge_u32 s2, {NWG}')
    A('s_cbranch_scc1 K0_ln')
    A(f's_load_dwordx2 s[4:5], s[0:1], {KA_C}')
    A(f's_load_dwordx2 s[6:7], s[0:1], {KA_WMOD}')
    A(f's_load_dwordx2 s[8:9], s[0:1], {KA_WS}')
    A('v_and_b32 v1, 3, v0')
    A('v_lshrrev_b32 v2, 2, v0')
    A('s_waitcnt lgkmcnt(0)')
    srd(A, 12, 4, 1152)
    srd(A, 16, 6, 576*3456*2)
    srd(A, 20, 8, 8*576*4, WS_MOD)
    A('s_mov_b32 s24, 6912')
    A('v_mul_lo_u32 v3, v2, s24')
    A('v_lshl_add_u32 v3, v1, 4, v3')
    A('s_lshl_b32 s25, s2, 6')
    A('v_add_u32 v3, s25, v3')
    A('v_lshlrev_b32 v4, 1, v2')
    for i in range(9):
        A(f's_mov_b32 s26, {i*64*6912}')
        A(f'buffer_load_dwordx4 {v(16+4*i,4)}, v3, s[16:19], s26 offen')
    for i in range(9):
        A(f'buffer_load_ushort v{5+i}, v4, s[12:15], 0 offen offset:{i*128}')
    for j in range(8):
        A(f'v_mov_b32 v{56+j}, 0')
    A('s_waitcnt vmcnt(0)')
    A('s_mov_b32 s27, 0xbfb8aa3b')
    for i in range(9):
        r = 5+i
        A(f'v_lshlrev_b32 v{r}, 16, v{r}')
        A(f'v_mul_f32 v64, s27, v{r}')
        A('v_exp_f32 v64, v64')
        A('s_nop 0')
        A('v_add_f32 v64, 1.0, v64')
        A('v_rcp_f32 v64, v64')
        A('s_nop 0')
        A(f'v_mul_f32 v64, v{r}, v64')
        A('v_cvt_pk_bf16_f32 v64, v64, v64')
        A(f'v_lshlrev_b32 v{r}, 16, v64')
    for i in range(9):
        for d in range(4):
            w = 16+4*i+d
            A(f'v_lshlrev_b32 v64, 16, v{w}')
            A(f'v_and_b32 v65, 0xffff0000, v{w}')
            A(f'v_fmac_f32 v{56+2*d}, v{5+i}, v64')
            A(f'v_fmac_f32 v{57+2*d}, v{5+i}, v65')
    A('s_nop 1')
    for j in range(8):
        A(f'v_add_f32_dpp v{56+j}, v{56+j}, v{56+j} row_ror:4 row_mask:0xf bank_mask:0xf')
    A('s_nop 1')
    for j in range(8):
        A(f'v_add_f32_dpp v{56+j}, v{56+j}, v{56+j} row_ror:8 row_mask:0xf bank_mask:0xf')
    A('v_lshrrev_b32 v66, 4, v0')
    A('v_lshlrev_b32 v66, 7, v66')
    A('v_lshl_add_u32 v66, v1, 5, v66')
    A('v_and_b32 v67, 15, v0')
    A('v_cmp_gt_u32 vcc, 4, v67')
    A('s_and_saveexec_b64 s[28:29], vcc')
    A('ds_write_b128 v66, v[56:59]')
    A('ds_write_b128 v66, v[60:63] offset:16')
    A('s_or_b64 exec, exec, s[28:29]')
    A('s_waitcnt lgkmcnt(0)')
    A('s_barrier')
    A('v_cmp_gt_u32 vcc, 32, v0')
    A('s_and_saveexec_b64 s[28:29], vcc')
    A('s_cbranch_execz K0_end')
    A('v_lshlrev_b32 v66, 2, v0')
    for i in range(16):
        A(f'ds_read_b32 v{16+i}, v66 offset:{i*128}')
    A('s_waitcnt lgkmcnt(0)')
    for st in [8,4,2,1]:
        for i in range(st):
            A(f'v_add_f32 v{16+i}, v{16+i}, v{16+i+st}')
    A('v_cvt_pk_bf16_f32 v16, v16, v16')
    A('v_lshlrev_b32 v16, 16, v16')
    A('v_add_f32 v17, 1.0, v16')
    A('v_cvt_pk_bf16_f32 v17, v17, v17')
    A('v_lshlrev_b32 v17, 16, v17')
    A('s_cmp_ge_u32 s2, 18')
    A('s_cselect_b32 s30, 1, 0')
    A('s_cmp_lt_u32 s2, 36')
    A('s_cselect_b32 s31, 1, 0')
    A('s_and_b32 s30, s30, s31')
    A('s_cmp_ge_u32 s2, 72')
    A('s_cselect_b32 s32, 1, 0')
    A('s_cmp_lt_u32 s2, 90')
    A('s_cselect_b32 s31, 1, 0')
    A('s_and_b32 s32, s32, s31')
    A('s_or_b32 s30, s30, s32')
    A('s_cmp_lg_u32 s30, 0')
    A('s_cbranch_scc0 K0_nop1')
    A('v_mov_b32 v16, v17')
    A.label('K0_nop1')
    A('s_lshl_b32 s25, s2, 7')
    A('buffer_store_dword v16, v66, s[20:23], s25 offen')
    A('s_cmp_ge_u32 s2, 36')
    A('s_cbranch_scc1 K0_noq')
    A(f's_mov_b32 s30, {f32bits((128**-0.5) * 1.4426950408889634)}')
    A('v_mul_f32 v17, s30, v16')
    A(f's_add_u32 s25, s25, {6*2304}')
    A('buffer_store_dword v17, v66, s[20:23], s25 offen sc0 sc1')
    A(f's_load_dwordx2 s[34:35], s[0:1], {KA_DBG}')
    A('s_waitcnt vmcnt(0) lgkmcnt(0)')
    srd(A, 36, 34, 256)
    A('v_mov_b32 v18, 1')
    A('v_mov_b32 v19, 0')
    A('v_cmp_eq_u32 vcc, 0, v0')
    A('s_and_saveexec_b64 s[40:41], vcc')
    A('buffer_atomic_add v18, v19, s[36:39], 0 offen sc1')
    A('s_or_b64 exec, exec, s[40:41]')
    A.label('K0_noq')
    A('s_waitcnt vmcnt(0)')
    A.label('K0_end')
    A('s_endpgm')
    A.label('K0_ln')
    A(f's_cmp_ge_u32 s2, {NWG+64}')
    A('s_cbranch_scc1 K0_cpf')
    A(f's_load_dwordx2 s[4:5], s[0:1], {KA_X}')
    A(f's_load_dwordx2 s[8:9], s[0:1], {KA_WS}')
    A(f's_load_dwordx2 s[34:35], s[0:1], {KA_DBG}')
    A(f's_sub_u32 s3, s2, {NWG}')
    A('v_lshrrev_b32 v1, 3, v0')
    A('v_and_b32 v2, 7, v0')
    A('s_waitcnt lgkmcnt(0)')
    srd(A, 12, 4, 2048*1152)
    srd(A, 16, 8, 2048*1152, WS_XH)
    A('s_mov_b32 s24, 1152')
    A('v_mul_lo_u32 v3, v1, s24')
    A('v_lshl_add_u32 v3, v2, 4, v3')
    A(f's_mul_i32 s25, s3, {32*1152}')
    for i in range(9):
        A(f'buffer_load_dwordx4 {v(8+4*i,4)}, v3, s[12:15], s25 offen offset:{128*i}')
    A('v_lshrrev_b32 v4, 4, v1')
    A('v_mul_u32_u24 v4, 18, v4')
    A('v_lshrrev_b32 v5, 2, v2')
    A('v_add_u32 v4, v4, v5')
    A('v_lshlrev_b32 v4, 10, v4')
    A('v_and_b32 v5, 3, v2')
    A('v_lshl_add_u32 v4, v5, 8, v4')
    A('v_and_b32 v5, 15, v1')
    A('v_lshl_add_u32 v4, v5, 4, v4')
    A('v_mov_b32 v6, 0')
    A('v_mov_b32 v7, 0')
    A('s_mov_b32 s26, 0x3f803f80')
    A('s_waitcnt vmcnt(0)')
    for i in range(36):
        A(f'v_dot2c_f32_bf16 v6, s26, v{8+i}')
        A(f'v_dot2c_f32_bf16 v7, v{8+i}, v{8+i}')
    A('s_nop 3')
    for pat in ['quad_perm:[1,0,3,2]', 'quad_perm:[2,3,0,1]', 'row_half_mirror']:
        A(f'v_add_f32_dpp v6, v6, v6 {pat} row_mask:0xf bank_mask:0xf')
        A(f'v_add_f32_dpp v7, v7, v7 {pat} row_mask:0xf bank_mask:0xf')
        A('s_nop 1')
    A(f's_mov_b32 s26, {f32bits(1.0/576)}')
    A('v_mul_f32 v6, s26, v6')
    A('v_mul_f32 v7, s26, v7')
    A('v_fma_f32 v7, -v6, v6, v7')
    A('v_max_f32 v7, 0, v7')
    A(f'v_add_f32 v7, {f32bits(1e-5)}, v7')
    A('v_rsq_f32 v7, v7')
    A('s_nop 0')
    A('v_mul_f32 v6, v6, v7')
    for i in range(36):
        r = 8+i
        A(f'v_lshlrev_b32 v44, 16, v{r}')
        A(f'v_and_b32 v45, 0xffff0000, v{r}')
        A('v_fma_f32 v44, v44, v7, -v6')
        A('v_fma_f32 v45, v45, v7, -v6')
        A(f'v_cvt_pk_bf16_f32 v{r}, v44, v45')
    srd(A, 36, 34, 256)
    srd(A, 20, 8, 4608, WS_MOD + 6*2304)
    A('v_mov_b32 v46, 0')
    A('s_mov_b32 s27, 400000')
    A('v_readfirstlane_b32 s28, v0')
    A('s_cmp_lg_u32 s28, 0')
    A('s_cbranch_scc1 K0_go')
    A('s_mov_b64 exec, 1')
    A.label('K0_poll')
    A('buffer_load_dword v47, v46, s[36:39], 0 offen sc0 sc1')
    A('s_waitcnt vmcnt(0)')
    A('v_readfirstlane_b32 s26, v47')
    A('s_cmp_ge_u32 s26, 36')
    A('s_cbranch_scc1 K0_go1')
    A('s_sleep 2')
    A('s_sub_u32 s27, s27, 1')
    A('s_cmp_lg_u32 s27, 0')
    A('s_cbranch_scc1 K0_poll')
    A.label('K0_go1')
    A('s_mov_b64 exec, -1')
    A.label('K0_go')
    A('s_barrier')
    A('v_lshlrev_b32 v47, 4, v0')
    A('buffer_load_dwordx4 v[48:51], v47, s[20:23], 0 offen sc0 sc1')
    A('s_movk_i32 s26, 4096')
    A('buffer_load_dwordx4 v[52:55], v47, s[20:23], s26 offen sc0 sc1')
    A('s_waitcnt vmcnt(0)')
    A('ds_write_b128 v47, v[48:51]')
    A('ds_write_b128 v47, v[52:55] offset:4096')
    A('v_lshlrev_b32 v46, 5, v2')
    A('s_waitcnt lgkmcnt(0)')
    A('s_barrier')
    for i in range(9):
        T = 48 + (i % 3) * 16
        if i == 0:
            for ii in range(2):
                Tn = 48 + ii*16
                for q in range(2):
                    A(f'ds_read_b128 {v(Tn+4*q,4)}, v46 offset:{256*ii+16*q}')
                    A(f'ds_read_b128 {v(Tn+8+4*q,4)}, v46 offset:{2304+256*ii+16*q}')
        if i + 2 < 9:
            Tn = 48 + ((i+2) % 3)*16
            for q in range(2):
                A(f'ds_read_b128 {v(Tn+4*q,4)}, v46 offset:{256*(i+2)+16*q}')
                A(f'ds_read_b128 {v(Tn+8+4*q,4)}, v46 offset:{2304+256*(i+2)+16*q}')
        A(f's_waitcnt lgkmcnt({8 if i + 2 < 9 else (4 if i + 1 < 9 else 0)})')
        for d in range(4):
            r = 8 + 4*i + d
            A(f'v_lshlrev_b32 v44, 16, v{r}')
            A(f'v_and_b32 v45, 0xffff0000, v{r}')
            A(f'v_fma_f32 v44, v44, v{T+8+2*d}, v{T+2*d}')
            A(f'v_fma_f32 v45, v45, v{T+9+2*d}, v{T+1+2*d}')
            A(f'v_cvt_pk_bf16_f32 v{r}, v44, v45')
    A(f's_mul_i32 s25, s3, {36*1024}')
    for i in range(9):
        A(f'buffer_store_dwordx4 {v(8+4*i,4)}, v4, s[16:19], s25 offen sc0 sc1')
        if i < 8: A('s_add_u32 s25, s25, 2048')
    A('s_waitcnt vmcnt(0)')
    A.label('K0_end2')
    A('s_endpgm')
    A.label('K0_cpf')
    A(f's_cmp_ge_u32 s2, {NWG+64+NPF}')
    A('s_cbranch_scc1 K0_dpf')
    A('s_getpc_b64 s[4:5]')
    A.label('K0_pcref')
    A(f's_sub_u32 s3, s2, {NWG+64}')
    A('s_lshl_b32 s3, s3, 14')
    A('s_add_u32 s3, s3, k1_attn_kernel-K0_pcref')
    A('s_add_u32 s4, s4, s3')
    A('s_addc_u32 s5, s5, 0')
    A('v_lshlrev_b32 v1, 4, v0')
    A(f's_sub_u32 s6, s2, {NWG+64}')
    A('s_lshl_b32 s6, s6, 14')
    for i in range(4):
        A(f'v_add_u32 v2, {4096*i}, v1')
        A('v_add_u32 v3, s6, v2')
        A('v_cmp_gt_u32 vcc, CODE_END-k1_attn_kernel-16, v3')
        A('s_and_saveexec_b64 s[8:9], vcc')
        A(f's_cbranch_execz K0_cskip{i}')
        A(f'global_load_dwordx4 {v(8+4*i,4)}, v2, s[4:5]')
        A.label(f'K0_cskip{i}')
        A('s_or_b64 exec, exec, s[8:9]')
    A('s_waitcnt vmcnt(0)')
    A.label('K0_end3')
    A('s_endpgm')
    A.label('K0_dpf')
    B0 = NWG+64+NPF
    A(f's_cmp_ge_u32 s2, {B0+NDP}')
    A('s_cbranch_scc1 K0_end4')
    A(f's_load_dwordx2 s[4:5], s[0:1], {KA_WQ}')
    A(f's_load_dwordx2 s[6:7], s[0:1], {KA_K}')
    A(f's_load_dwordx2 s[8:9], s[0:1], {KA_V}')
    A(f's_sub_u32 s3, s2, {B0}')
    A('v_lshlrev_b32 v1, 4, v0')
    A('s_waitcnt lgkmcnt(0)')
    srd(A, 12, 4, 576*8192)
    srd(A, 16, 6, 16*524288)
    srd(A, 20, 8, 16*524288)
    A('s_cmp_ge_u32 s3, 72')
    A('s_cbranch_scc1 K0_dkv')
    A('s_lshl_b32 s24, s3, 16')
    for i in range(16):
        A(f'buffer_load_dwordx4 {v(4+4*i,4)}, v1, s[12:15], s24 offen')
        A('s_add_u32 s24, s24, 4096')
    A('s_waitcnt vmcnt(0)')
    A('s_endpgm')
    A.label('K0_dkv')
    A('s_sub_u32 s3, s3, 72')
    A('s_and_b32 s24, s3, 15')
    A('s_lshl_b32 s24, s24, 19')
    A('s_lshr_b32 s25, s3, 4')
    A('s_lshl_b32 s25, s25, 15')
    A('s_add_u32 s24, s24, s25')
    for i in range(8):
        A(f'buffer_load_dwordx4 {v(4+8*i,4)}, v1, s[16:19], s24 offen')
        A(f'buffer_load_dwordx4 {v(8+8*i,4)}, v1, s[20:23], s24 offen')
        A('s_add_u32 s24, s24, 4096')
    A('s_waitcnt vmcnt(0)')
    A.label('K0_end4')
    A('s_endpgm')
    return dict(name=name, grid=NWG+64+NPF+NDP, block=256, lds=8192, nvgpr=96, accum=96)
```

```python
from asmlib import *

def gen_k0(A, name='k0_mod_kernel'):
    NWG = 108
    import os
    NPF = int(os.environ.get('NPF','12'))
    NDP = int(os.environ.get('NDP','136'))
    kernel_header(A, name)
    A(f's_cmp_ge_u32 s2, {NWG}')
    A('s_cbranch_scc1 K0_ln')
    A(f's_load_dwordx2 s[4:5], s[0:1], {KA_C}')
    A(f's_load_dwordx2 s[6:7], s[0:1], {KA_WMOD}')
    A(f's_load_dwordx2 s[8:9], s[0:1], {KA_WS}')
    A('v_and_b32 v1, 3, v0')
    A('v_lshrrev_b32 v2, 2, v0')
    A('s_waitcnt lgkmcnt(0)')
    srd(A, 12, 4, 1152)
    srd(A, 16, 6, 576*3456*2)
    srd(A, 20, 8, 8*576*4, WS_MOD)
    A('s_mov_b32 s24, 6912')
    A('v_mul_lo_u32 v3, v2, s24')
    A('v_lshl_add_u32 v3, v1, 4, v3')
    A('s_lshl_b32 s25, s2, 6')
    A('v_add_u32 v3, s25, v3')
    A('v_lshlrev_b32 v4, 1, v2')
    for i in range(9):
        A(f's_mov_b32 s26, {i*64*6912}')
        A(f'buffer_load_dwordx4 {v(16+4*i,4)}, v3, s[16:19], s26 offen')
    for i in range(9):
        A(f'buffer_load_ushort v{5+i}, v4, s[12:15], 0 offen offset:{i*128}')
    for j in range(8):
        A(f'v_mov_b32 v{56+j}, 0')
    A('s_waitcnt vmcnt(0)')
    A('s_mov_b32 s27, 0xbfb8aa3b')
    for i in range(9):
        r = 5+i
        A(f'v_lshlrev_b32 v{r}, 16, v{r}')
        A(f'v_mul_f32 v64, s27, v{r}')
        A('v_exp_f32 v64, v64')
        A('s_nop 0')
        A('v_add_f32 v64, 1.0, v64')
        A('v_rcp_f32 v64, v64')
        A('s_nop 0')
        A(f'v_mul_f32 v64, v{r}, v64')
        A('v_cvt_pk_bf16_f32 v64, v64, v64')
        A(f'v_lshlrev_b32 v{r}, 16, v64')
    for i in range(9):
        for d in range(4):
            w = 16+4*i+d
            A(f'v_lshlrev_b32 v64, 16, v{w}')
            A(f'v_and_b32 v65, 0xffff0000, v{w}')
            A(f'v_fmac_f32 v{56+2*d}, v{5+i}, v64')
            A(f'v_fmac_f32 v{57+2*d}, v{5+i}, v65')
    A('s_nop 1')
    for j in range(8):
        A(f'v_add_f32_dpp v{56+j}, v{56+j}, v{56+j} row_ror:4 row_mask:0xf bank_mask:0xf')
    A('s_nop 1')
    for j in range(8):
        A(f'v_add_f32_dpp v{56+j}, v{56+j}, v{56+j} row_ror:8 row_mask:0xf bank_mask:0xf')
    A('v_lshrrev_b32 v66, 4, v0')
    A('v_lshlrev_b32 v66, 7, v66')
    A('v_lshl_add_u32 v66, v1, 5, v66')
    A('v_and_b32 v67, 15, v0')
    A('v_cmp_gt_u32 vcc, 4, v67')
    A('s_and_saveexec_b64 s[28:29], vcc')
    A('ds_write_b128 v66, v[56:59]')
    A('ds_write_b128 v66, v[60:63] offset:16')
    A('s_or_b64 exec, exec, s[28:29]')
    A('s_waitcnt lgkmcnt(0)')
    A('s_barrier')
    A('v_cmp_gt_u32 vcc, 32, v0')
    A('s_and_saveexec_b64 s[28:29], vcc')
    A('s_cbranch_execz K0_end')
    A('v_lshlrev_b32 v66, 2, v0')
    for i in range(16):
        A(f'ds_read_b32 v{16+i}, v66 offset:{i*128}')
    A('s_waitcnt lgkmcnt(0)')
    for st in [8,4,2,1]:
        for i in range(st):
            A(f'v_add_f32 v{16+i}, v{16+i}, v{16+i+st}')
    A('v_cvt_pk_bf16_f32 v16, v16, v16')
    A('v_lshlrev_b32 v16, 16, v16')
    A('v_add_f32 v17, 1.0, v16')
    A('v_cvt_pk_bf16_f32 v17, v17, v17')
    A('v_lshlrev_b32 v17, 16, v17')
    A('s_cmp_ge_u32 s2, 18')
    A('s_cselect_b32 s30, 1, 0')
    A('s_cmp_lt_u32 s2, 36')
    A('s_cselect_b32 s31, 1, 0')
    A('s_and_b32 s30, s30, s31')
    A('s_cmp_ge_u32 s2, 72')
    A('s_cselect_b32 s32, 1, 0')
    A('s_cmp_lt_u32 s2, 90')
    A('s_cselect_b32 s31, 1, 0')
    A('s_and_b32 s32, s32, s31')
    A('s_or_b32 s30, s30, s32')
    A('s_cmp_lg_u32 s30, 0')
    A('s_cbranch_scc0 K0_nop1')
    A('v_mov_b32 v16, v17')
    A.label('K0_nop1')
    A('s_lshl_b32 s25, s2, 7')
    A('buffer_store_dword v16, v66, s[20:23], s25 offen')
    A('s_cmp_ge_u32 s2, 36')
    A('s_cbranch_scc1 K0_noq')
    A(f's_mov_b32 s30, {f32bits((128**-0.5) * 1.4426950408889634)}')
    A('v_mul_f32 v17, s30, v16')
    A(f's_add_u32 s25, s25, {6*2304}')
    A('buffer_store_dword v17, v66, s[20:23], s25 offen sc0 sc1')
    A.label('K0_noq')
    A('s_waitcnt vmcnt(0)')
    A.label('K0_end')
    A('s_endpgm')
    A.label('K0_ln')
    A(f's_cmp_ge_u32 s2, {NWG+64}')
    A('s_cbranch_scc1 K0_cpf')
    A(f's_load_dwordx2 s[4:5], s[0:1], {KA_X}')
    A(f's_load_dwordx2 s[8:9], s[0:1], {KA_WS}')
    A(f's_sub_u32 s3, s2, {NWG}')
    A('v_lshrrev_b32 v1, 3, v0')
    A('v_and_b32 v2, 7, v0')
    A('s_waitcnt lgkmcnt(0)')
    srd(A, 12, 4, 2048*1152)
    srd(A, 16, 8, 2048*1152, WS_XH)
    A('s_mov_b32 s24, 1152')
    A('v_mul_lo_u32 v3, v1, s24')
    A('v_lshl_add_u32 v3, v2, 4, v3')
    A(f's_mul_i32 s25, s3, {32*1152}')
    for i in range(9):
        A(f'buffer_load_dwordx4 {v(8+4*i,4)}, v3, s[12:15], s25 offen offset:{128*i}')
    A('v_lshrrev_b32 v4, 4, v1')
    A('v_mul_u32_u24 v4, 18, v4')
    A('v_lshrrev_b32 v5, 2, v2')
    A('v_add_u32 v4, v4, v5')
    A('v_lshlrev_b32 v4, 10, v4')
    A('v_and_b32 v5, 3, v2')
    A('v_lshl_add_u32 v4, v5, 8, v4')
    A('v_and_b32 v5, 15, v1')
    A('v_lshl_add_u32 v4, v5, 4, v4')
    A('v_mov_b32 v6, 0')
    A('v_mov_b32 v7, 0')
    A('s_mov_b32 s26, 0x3f803f80')
    A('s_waitcnt vmcnt(0)')
    for i in range(36):
        A(f'v_dot2c_f32_bf16 v6, s26, v{8+i}')
        A(f'v_dot2c_f32_bf16 v7, v{8+i}, v{8+i}')
    A('s_nop 3')
    for pat in ['quad_perm:[1,0,3,2]', 'quad_perm:[2,3,0,1]', 'row_half_mirror']:
        A(f'v_add_f32_dpp v6, v6, v6 {pat} row_mask:0xf bank_mask:0xf')
        A(f'v_add_f32_dpp v7, v7, v7 {pat} row_mask:0xf bank_mask:0xf')
        A('s_nop 1')
    A(f's_mov_b32 s26, {f32bits(1.0/576)}')
    A('v_mul_f32 v6, s26, v6')
    A('v_mul_f32 v7, s26, v7')
    A('v_fma_f32 v7, -v6, v6, v7')
    A('v_max_f32 v7, 0, v7')
    A(f'v_add_f32 v7, {f32bits(1e-5)}, v7')
    A('v_rsq_f32 v7, v7')
    A('s_nop 0')
    A('v_mul_f32 v6, v6, v7')
    for i in range(36):
        r = 8+i
        A(f'v_lshlrev_b32 v44, 16, v{r}')
        A(f'v_and_b32 v45, 0xffff0000, v{r}')
        A('v_fma_f32 v44, v44, v7, -v6')
        A('v_fma_f32 v45, v45, v7, -v6')
        A(f'v_cvt_pk_bf16_f32 v{r}, v44, v45')
    A(f's_mul_i32 s25, s3, {36*1024}')
    for i in range(9):
        A(f'buffer_store_dwordx4 {v(8+4*i,4)}, v4, s[16:19], s25 offen sc0 sc1')
        if i < 8: A('s_add_u32 s25, s25, 2048')
    A('s_waitcnt vmcnt(0)')
    A.label('K0_end2')
    A('s_endpgm')
    A.label('K0_cpf')
    A(f's_cmp_ge_u32 s2, {NWG+64+NPF}')
    A('s_cbranch_scc1 K0_dpf')
    A('s_getpc_b64 s[4:5]')
    A.label('K0_pcref')
    A(f's_sub_u32 s3, s2, {NWG+64}')
    A('s_lshl_b32 s3, s3, 14')
    A('s_add_u32 s3, s3, k1_attn_kernel-K0_pcref')
    A('s_add_u32 s4, s4, s3')
    A('s_addc_u32 s5, s5, 0')
    A('v_lshlrev_b32 v1, 4, v0')
    A(f's_sub_u32 s6, s2, {NWG+64}')
    A('s_lshl_b32 s6, s6, 14')
    for i in range(4):
        A(f'v_add_u32 v2, {4096*i}, v1')
        A('v_add_u32 v3, s6, v2')
        A('v_cmp_gt_u32 vcc, CODE_END-k1_attn_kernel-16, v3')
        A('s_and_saveexec_b64 s[8:9], vcc')
        A(f's_cbranch_execz K0_cskip{i}')
        A(f'global_load_dwordx4 {v(8+4*i,4)}, v2, s[4:5]')
        A.label(f'K0_cskip{i}')
        A('s_or_b64 exec, exec, s[8:9]')
    A('s_waitcnt vmcnt(0)')
    A.label('K0_end3')
    A('s_endpgm')
    A.label('K0_dpf')
    B0 = NWG+64+NPF
    A(f's_cmp_ge_u32 s2, {B0+NDP}')
    A('s_cbranch_scc1 K0_end4')
    A(f's_load_dwordx2 s[4:5], s[0:1], {KA_WQ}')
    A(f's_load_dwordx2 s[6:7], s[0:1], {KA_K}')
    A(f's_load_dwordx2 s[8:9], s[0:1], {KA_V}')
    A(f's_sub_u32 s3, s2, {B0}')
    A('v_lshlrev_b32 v1, 4, v0')
    A('s_waitcnt lgkmcnt(0)')
    srd(A, 12, 4, 576*8192)
    srd(A, 16, 6, 16*524288)
    srd(A, 20, 8, 16*524288)
    A('s_cmp_ge_u32 s3, 72')
    A('s_cbranch_scc1 K0_dkv')
    A('s_lshl_b32 s24, s3, 16')
    for i in range(16):
        A(f'buffer_load_dwordx4 {v(4+4*i,4)}, v1, s[12:15], s24 offen')
        A('s_add_u32 s24, s24, 4096')
    A('s_waitcnt vmcnt(0)')
    A('s_endpgm')
    A.label('K0_dkv')
    A('s_sub_u32 s3, s3, 72')
    A('s_and_b32 s24, s3, 15')
    A('s_lshl_b32 s24, s24, 19')
    A('s_lshr_b32 s25, s3, 4')
    A('s_lshl_b32 s25, s25, 15')
    A('s_add_u32 s24, s24, s25')
    for i in range(8):
        A(f'buffer_load_dwordx4 {v(4+8*i,4)}, v1, s[16:19], s24 offen')
        A(f'buffer_load_dwordx4 {v(8+8*i,4)}, v1, s[20:23], s24 offen')
        A('s_add_u32 s24, s24, 4096')
    A('s_waitcnt vmcnt(0)')
    A.label('K0_end4')
    A('s_endpgm')
    return dict(name=name, grid=NWG+64+NPF+NDP, block=256, lds=2048, nvgpr=72, accum=72)
```
